```python
import torch

def _softmax(x, axis=-1):
    return torch.softmax(x, dim=axis)
def _gelu(x):
    return torch.nn.functional.gelu(x, approximate="tanh")
def _silu(x):
    return torch.nn.functional.silu(x)
def _sigmoid(x):
    return torch.sigmoid(x)
def _layernorm(x, axis=-1, eps=1e-5):
    m = x.mean(dim=axis, keepdim=True)
    v = x.var(dim=axis, keepdim=True, unbiased=False)
    return (x - m) / torch.sqrt(v + eps)
def _scatter_add(tgt, idx, src, axis=0):
    return tgt.clone().index_add_(axis, idx, src)
def _segment_sum(src, seg, n):
    out = torch.zeros((n,) + src.shape[1:], dtype=src.dtype)
    return out.index_add_(0, seg, src)
def _pad(x, pw):
    flat = tuple(v for pair in reversed(pw) for v in pair)
    return torch.nn.functional.pad(x, flat)

kernel_name = 'standalone__mixer_token_mlp__sampling'

def setup_inputs():

    _w = (lambda a: (lambda t: t.to(torch.bfloat16) if t.is_floating_point() else t)(torch.as_tensor(a)))
    B, S, D, F = 32, 32, 576, 4608
    return {
        "x": _w((lambda *s: torch.randn(*s, dtype=torch.bfloat16) * 0.05)(B, S, D)),
        "w1": _w((lambda *s: torch.randn(*s, dtype=torch.bfloat16) * 0.2)(S, F) * (S ** -0.5)),
        "b1": _w((lambda *s: torch.randn(*s, dtype=torch.bfloat16) * 3.2)(F) * 0.02),
        "w2": _w((lambda *s: torch.randn(*s, dtype=torch.bfloat16) * 0.05)(F, S) * (F ** -0.5)),
        "b2": _w((lambda *s: torch.randn(*s, dtype=torch.bfloat16) * 0.1)(S) * 0.02),
    }

def reference(x, w1, b1, w2, b2):
    B, S, D = x.shape
    h = _layernorm(x, axis=-1)
    u = torch.einsum("bsd,sf->bdf", h, w1) + b1
    u = _gelu(u)
    y = torch.einsum("bdf,fs->bds", u, w2) + b2
    return (lambda x, *d: x.permute(*d))(y, 0, 2, 1)
```

```python
import re

def R(base, n=1):
    return list(range(base, base + n))

def vr(base, n=1):
    return 'v%d' % base if n == 1 else 'v[%d:%d]' % (base, base + n - 1)

class I:
    __slots__ = ('t', 'k', 'rd', 'wr', 'srcc', 'lg', 'vm', 'note')
    def __init__(self, t, k, rd=(), wr=(), srcc=()):
        self.t = t
        self.k = k
        self.rd = set(rd)
        self.wr = set(wr)
        self.srcc = set(srcc)
        self.lg = None
        self.vm = None
        self.note = ''

class Block:
    def __init__(self, name):
        self.name = name
        self.ins = []
    def add(self, i):
        if isinstance(i, (list, tuple)):
            for x in i: self.add(x)
        else:
            self.ins.append(i)
        return i
    def raw(self, text, k='other'):
        for l in text.strip().split('\n'):
            l = l.strip()
            if l: self.ins.append(I(l, k))

def wait_pass(trace):
    lq = []
    vq = []
    for b in trace:
        for i in b.ins:
            if i.k == 'wait':
                m = re.search(r'lgkmcnt\((\d+)\)', i.t)
                if m:
                    n = int(m.group(1)); lq[:] = lq[len(lq) - n:] if n < len(lq) and n > 0 else ([] if n == 0 else lq)
                m = re.search(r'vmcnt\((\d+)\)', i.t)
                if m:
                    n = int(m.group(1)); vq[:] = vq[len(vq) - n:] if n < len(vq) and n > 0 else ([] if n == 0 else vq)
                continue
            touch = i.rd | i.wr
            for q, attr, mx in ((lq, 'lg', 15), (vq, 'vm', 63)):
                last = -1
                for p, d in enumerate(q):
                    if d & touch: last = p
                if last >= 0:
                    n = min(len(q) - 1 - last, mx)
                    cur = getattr(i, attr)
                    setattr(i, attr, n if cur is None else min(cur, n))
                    del q[:len(q) - n]
            if i.k in ('dsr', 'dsw'): lq.append(set(i.wr))
            if i.k in ('vld', 'vst'): vq.append(set(i.wr))

def flat(trace):
    out = []
    for b in trace:
        for i in b.ins:
            if i.k == 'label': continue
            if i.lg is not None or i.vm is not None:
                out.append(I('s_waitcnt', 'wait'))
            out.append(i)
    return out

def states(i):
    m = re.match(r's_nop (\d+)', i.t)
    return int(m.group(1)) + 1 if m else 1

def hazard_check(trace):
    seq = flat(trace)
    errs = []
    isv = lambda x: x.k in ('valu', 'trans', 'pk', 'dpp', 'dot')
    for p, a in enumerate(seq):
        dist = 0
        for q in range(p + 1, min(p + 24, len(seq))):
            b = seq[q]
            need = 0
            if a.k == 'mfma':
                if b.k == 'mfma':
                    if a.wr & (b.rd - b.srcc): need = 12
                    elif a.wr & b.srcc and a.wr != b.srcc: need = 10
                elif a.wr & (b.rd | b.wr): need = 12
                if isv(b) and a.srcc & b.wr: need = max(need, 7)
            elif isv(a):
                if b.k == 'mfma' and a.wr & b.rd: need = 2
                if a.k == 'trans' and isv(b) and b.k != 'trans' and a.wr & b.rd: need = max(need, 1)
                if b.k == 'dpp' and a.wr & b.rd: need = max(need, 2)
                if a.k == 'dot' and b.k != 'dot' and a.wr & (b.rd | b.wr): need = max(need, 3)
                if b.k == 'rfl' and a.wr & b.rd: need = max(need, 1)
            elif a.k == 'vst' and len(a.rd) >= 4 and isv(b) and a.rd & b.wr:
                need = 2
            if dist < need:
                errs.append('hazard: "%s" -> "%s" dist %d need %d' % (a.t, b.t, dist, need))
            dist += states(b)
    return errs

def render(b):
    out = []
    for i in b.ins:
        if i.lg is not None or i.vm is not None:
            w = 's_waitcnt'
            if i.vm is not None: w += ' vmcnt(%d)' % i.vm
            if i.lg is not None: w += ' lgkmcnt(%d)' % i.lg
            out.append('    ' + w)
        out.append(('' if i.k == 'label' else '    ') + i.t)
    return '\n'.join(out)
```

```python
import sys, struct, math
from asmlib import *

KN = 'standalone__mixer_token_mlp__sampling_kernel'
def f2u(x): return struct.unpack('<I', struct.pack('<f', x))[0]

class Cfg:
    vsplit = {0: (0, 1, 4), 'S': (0, 4), 1: (0, 4, 5)}
    diag = False
    prio = None
cfg = Cfg()

KAPPA = 0.75
C0 = -2.0 * math.sqrt(2.0 / math.pi) * math.log2(math.e)
C1 = C0 * 0.044715
TB = 64512
LDS_BYTES = 163840
HBUF = 1024; HSTR = 320
SSLOT = 16384

vL16 = 0; vO1 = 1; vO2 = 2; vOB = 3; vBR = 4; vHE = 6; vHO = 8; vSEL = 10; vB2 = 11
vT = 12; vJ = 18; vG = 20
vH = {0: 28, 1: 36, 'S': 44}
vY = {0: 52, 1: 68, 'S': 84}
vU = [100, 116]; vBI = 132
vA = 148; vB = 156; vC = 164; vD = 172
va = 180; vx = 188; vc = 196; vy = 204; vz = 212
vR = [220, 232]
vS = 244
sX = 20; sW1 = 24; sW2 = 28; sB1 = 32; sOUT = 36; sWS = 40
sW = 44; sBt = 45; sHH = 46; sCq = 47; sROW = 48
sO = 64; sPN = 65; sOW2 = 66; sOB = 67; sCC = 68; sIK = 70; sLO = 72; sHI = 73
sT = 74
def sr(b, n): return 's[%d:%d]' % (b, b + n - 1)

def valu(t, rd, wr, k='valu'): return I(t, k, rd, wr)
def pkmul(d, a, b): return I('v_pk_mul_f32 %s, %s, %s' % (vr(d, 2), vr(a, 2), vr(b, 2)), 'pk', R(a, 2) + R(b, 2), R(d, 2))
def pkfma_c(d, a): return I('v_pk_fma_f32 %s, %s, %s, %s op_sel:[0,0,1] op_sel_hi:[1,0,1]' % (vr(d, 2), vr(a, 2), sr(sCC, 2), sr(sCC, 2)), 'pk', R(a, 2), R(d, 2))
def pkfma_k(d, a): return I('v_pk_fma_f32 %s, %s, %s, %s' % (vr(d, 2), vr(a, 2), sr(sIK, 2), sr(sIK, 2)), 'pk', R(a, 2), R(d, 2))
def vexp(d): return I('v_exp_f32 v%d, v%d' % (d, d), 'trans', [d], [d])
def vrcp(d): return I('v_rcp_f32 v%d, v%d' % (d, d), 'trans', [d], [d])
def cvtpk(d, a, b): return I('v_cvt_pk_bf16_f32 v%d, v%d, v%d' % (d, a, b), 'valu', [a, b], [d])
def mfma16(d, a, b, c):
    cs = '0' if c is None else vr(c, 16)
    cr = [] if c is None else R(c, 16)
    return I('v_mfma_f32_32x32x16_bf16 %s, %s, %s, %s' % (vr(d, 16), vr(a, 4), vr(b, 4), cs), 'mfma', R(a, 4) + R(b, 4) + cr, R(d, 16), cr)
def mfma8(d, a, b):
    return I('v_mfma_f32_32x32x8_bf16 %s, %s, %s, 0' % (vr(d, 16), vr(a, 2), vr(b, 2)), 'mfma', R(a, 2) + R(b, 2), R(d, 16))
def perm_s(d, hi, lo, s): return I('v_perm_b32 v%d, v%d, v%d, s%d' % (d, hi, lo, s), 'valu', [hi, lo], [d])
def perm_v(d, hi, lo): return I('v_perm_b32 v%d, v%d, v%d, v%d' % (d, hi, lo, vSEL), 'valu', [hi, lo, vSEL], [d])
def salu(t): return I(t, 'salu')
def label(n): return I(n + ':', 'label')
def wait(t): return I('s_waitcnt ' + t, 'wait')
COST = {'valu': 4, 'pk': 4, 'trans': 8, 'mfma': 8}
def cost(i):
    if i.k == 'mfma' and 'x8_' in i.t: return 4
    return COST.get(i.k, 0)

def w1_loads():
    o = []
    for i in range(8):
        for blk, odd in ((vA, 0), (vB, 1)):
            o.append(I('buffer_load_dword v%d, v%d, %s, s%d offen' % (blk + i, vO1, sr(sW1, 4), sROW + 2 * i + odd), 'vld', [vO1], [blk + i]))
    return o
def w2_loads(odd):
    o = []
    for i in range(8):
        m = 8 * (i // 2) + 2 * (i % 2) + odd
        for blk, par in (((vx if odd else va), 0), ((vy if odd else vc), 1)):
            o.append(I('buffer_load_dword v%d, v%d, %s, s%d offen offset:%d' % (blk + i, vO2, sr(sW2, 4), sOW2, 128 * m + 64 * par), 'vld', [vO2], [blk + i]))
    return o
def bias_load():
    return I('buffer_load_dword v%d, v%d, %s, s%d offen' % (vBR, vOB, sr(sB1, 4), sOB), 'vld', [vOB], [vBR])
def set_next_pair(o_sgpr_expr_add):
    t = []
    t.append(salu('s_add_u32 s%d, s%d, s%d' % (sPN, sO, sT + 15)))
    if o_sgpr_expr_add: t.append(salu('s_add_u32 s%d, s%d, %d' % (sPN, sPN, o_sgpr_expr_add)))
    t.append(salu('s_sub_u32 s%d, s%d, 72' % (sT, sPN)))
    t.append(salu('s_cmp_ge_u32 s%d, 72' % sPN))
    t.append(salu('s_cselect_b32 s%d, s%d, s%d' % (sPN, sT, sPN)))
    t.append(salu('s_lshl_b32 s%d, s%d, 7' % (sOB, sPN)))
    t.append(salu('s_lshl_b32 s%d, s%d, 12' % (sOW2, sPN)))
    t.append(salu('s_add_u32 s%d, s6, s%d' % (sW1, sOB)))
    t.append(salu('s_addc_u32 s%d, s7, 0' % (sW1 + 1)))
    t.append(salu('s_sub_u32 s%d, 294912, s%d' % (sW1 + 2, sOB)))
    return t
def w1_perm(kind):
    return [perm_s((vD if kind == 'E' else vC) + i, vB + i, vA + i, sLO if kind == 'E' else sHI) for i in range(8)]
def w2_perm(kind):
    if kind == 'E': return [perm_v(va + i, vx + i, va + i) for i in range(8)]
    return [perm_v(vz + i, vy + i, vc + i) for i in range(8)]

class Tile:
    def __init__(self, f, dt, par):
        self.f = f; self.dt = dt; self.U = vU[par]; self.R = vR[par]
        self.V = list(cfg.vsplit[dt]); self.L = [i for i in range(8) if i not in self.V]
        self.w1 = vD if f == 'E' else vC
        self.w2 = va if f == 'E' else vz
    def g1(self):
        h = vH[self.dt]
        return [mfma16(self.U, self.w1, h, vBI), mfma16(self.U, self.w1 + 4, h + 4, self.U)]
    def g2(self):
        y = vY[self.dt]
        return [mfma16(y, vG, self.w2, y), mfma16(y, vG + 4, self.w2 + 4, y)]
    def arg(self):
        n = len(self.V)
        a = [pkmul(vT + 2 * j, self.U + 2 * g, self.U + 2 * g) for j, g in enumerate(self.V)]
        b = [pkfma_c(vT + 2 * j, vT + 2 * j) for j in range(n)]
        c = [pkmul(vT + 2 * j, vT + 2 * j, self.U + 2 * g) for j, g in enumerate(self.V)]
        return a + b + c
    def exp(self): return [vexp(vT + j) for j in range(2 * len(self.V))]
    def dfma(self): return [pkfma_k(vT + 2 * j, vT + 2 * j) for j in range(len(self.V))]
    def rcp(self): return [vrcp(vT + j) for j in range(2 * len(self.V))]
    def mul(self): return [pkmul(self.U + 2 * g, self.U + 2 * g, vT + 2 * j) for j, g in enumerate(self.V)]
    def cvt(self): return [cvtpk(vG + g, self.U + 2 * g, self.U + 2 * g + 1) for g in self.V]
    def looks(self):
        o = []
        for j, g in enumerate(self.L):
            for h in range(2):
                r = self.R + 2 * j + h; u = self.U + 2 * g + h
                o.append([I('v_lshlrev_b32_sdwa v%d, 1, v%d dst_sel:DWORD dst_unused:UNUSED_PAD src0_sel:DWORD src1_sel:WORD_1' % (r, u), 'valu', [u], [r]),
                          I('%s v%d, v%d offset:%d' % ('ds_read_u16_d16_hi' if h else 'ds_read_u16', r, r, TB), 'dsr', [r], [r])])
        return o
    def ors(self):
        return [(g, I('v_or_b32 v%d, v%d, v%d' % (vG + g, self.R + 2 * j, self.R + 2 * j + 1), 'valu', R(self.R + 2 * j, 2), [vG + g])) for j, g in enumerate(self.L)]

def slot(prev, cur, nxt, bias, perms, side, side_late=()):
    out = []
    looks = cur.looks() if cur else []
    P1 = prev.mul() + (cur.arg() if cur else [])
    ors = prev.ors()
    ors_lo = [i for g, i in ors if g < 4]; ors_hi = [i for g, i in ors if g >= 4]
    exps = cur.exp() if cur else []
    total = sum(map(cost, P1 + prev.cvt() + exps + ors_lo + ors_hi + perms)) + 4 * len(looks) + 32
    if cur: total += sum(map(cost, cur.dfma() + cur.rcp()))
    st = {'t': 0, 'nl': 0, 'ns': 0}
    side = list(side)
    lper = total * cfg.look_span / max(1, len(looks))
    sper = total * 0.8 / max(1, len(side))
    def look():
        out.extend(looks[st['nl']]); st['nl'] += 1; st['t'] += 4
    def emit(i):
        out.append(i); st['t'] += cost(i)
        while st['nl'] < len(looks) and st['t'] >= st['nl'] * lper: look()
        while st['ns'] < len(side) and st['t'] >= st['ns'] * sper:
            out.append(side[st['ns']]); st['ns'] += 1
    for i in P1: emit(i)
    for i in prev.cvt(): emit(i)
    fill = exps[:3] + ors_lo + exps[3:] + ors_hi + list(perms)
    def fill_until(t):
        while st['t'] < t:
            if fill: emit(fill.pop(0))
            elif st['nl'] < len(looks): look()
            else: break
    def force(lst):
        rem = [i for i in lst if i in fill]
        for i in rem: fill.remove(i); emit(i)
        while True:
            pos = max([out.index(i) for i in lst] + [-10])
            if len(out) - 1 - pos >= 2: break
            if fill: emit(fill.pop(0))
            elif st['nl'] < len(looks): look()
            else: out.append(I('s_nop 0', 'other'))
    ms = []
    if bias is not None: ms.append((bias, None))
    if nxt: ms += [(m, None) for m in nxt.g1()]
    g2 = prev.g2()
    cv = prev.cvt()
    ms += [(g2[0], ors_lo), (g2[1], ors_hi)]
    tlast = None
    for m, req in ms:
        if tlast is not None: fill_until(tlast + 32)
        if req is not None: force(req)
        tlast = st['t']
        emit(m)
    out.extend(side_late)
    fill_until(tlast + 44)
    for i in [i for i in fill if i.k == 'trans']: fill.remove(i); emit(i)
    if cur:
        if out[-1].k == 'trans': out.append(I('s_nop 0', 'other'))
        for i in cur.dfma(): emit(i)
        for i in cur.rcp():
            emit(i)
            if fill: emit(fill.pop(0))
    while fill: emit(fill.pop(0))
    while st['nl'] < len(looks): look()
    while st['ns'] < len(side): out.append(side[st['ns']]); st['ns'] += 1
    if out[-1].k == 'trans': out.append(I('s_nop 0', 'other'))
    return out

def loop_body(name, dts):
    b = Block(name)
    n1 = len(dts); n = 2 * n1
    tiles = [Tile('E' if i < n1 else 'O', dts[i % n1], i % 2) for i in range(n)]
    prevlast = Tile('O', 1, 1); nextfirst = Tile('E', 0, 0)
    b.add(set_next_pair(8))
    for k in range(n):
        prev = tiles[k - 1] if k else prevlast
        nxt = tiles[k + 1] if k + 1 < n else nextfirst
        bias = None; perms = []; side = []; late = []
        if k == n1 - 1: bias = mfma8(vBI, vBR, vHO); late = [bias_load()]
        if k == n - 1: bias = mfma8(vBI, vBR, vHE)
        if k == 0: perms = w2_perm('E'); side = w1_loads()
        if k == 1: perms = w2_perm('O')
        if k == 2: side = w2_loads(1)
        if k == n1 + 1: side = w2_loads(0)
        if k == n - 2: perms = w1_perm('E')
        if k == n - 1: perms = w1_perm('O')
        b.add(slot(prev, tiles[k], nxt, bias, perms, side, late))
    b.add(salu('s_add_u32 s%d, s%d, 8' % (sO, sO)))
    return b

def srd(b, s, lo, size):
    b.add(salu('s_mov_b32 s%d, s%d' % (s, lo)))
    b.add(salu('s_mov_b32 s%d, s%d' % (s + 1, lo + 1)))
    b.add(salu('s_mov_b32 s%d, %d' % (s + 2, size)))
    b.add(salu('s_mov_b32 s%d, 0x00020000' % (s + 3)))

def V(t, rd, wr, k='valu'): return I(t, k, rd, wr)

def stamp(b, idx):
    if not cfg.diag: return
    b.add(I('s_memtime %s' % sr(90 + 0, 2), 'other'))
    b.add(wait('lgkmcnt(0)'))
    b.add(V('v_writelane_b32 v19, s90, %d' % idx, [], [19]))

def prologue():
    b = Block('PRO')
    t0, t1, t2, t3 = vS, vS + 1, vS + 2, vS + 3
    b.add(I('s_load_dwordx16 s[4:19], s[0:1], 0', 'other'))
    b.add(salu('s_cmp_ge_u32 s2, 256'))
    b.add(salu('s_cbranch_scc1 L_END'))
    b.add(V('v_lshrrev_b32 v%d, 6, v0' % t0, [0], [t0]))
    b.add(V('v_mul_u32_u24 v%d, 18, v0' % vJ, [0], [vJ]))
    b.add(V('v_readfirstlane_b32 s%d, v%d' % (sW, t0), [t0], [], 'rfl'))
    b.add(V('v_and_b32 v%d, 63, v0' % t1, [0], [t1]))
    if cfg.diag:
        b.add(V('v_mov_b32 v19, 0', [], [19]))
    b.add(salu('s_and_b32 s%d, s2, 31' % sBt))
    b.add(salu('s_lshr_b32 s%d, s2, 7' % sHH))
    b.add(salu('s_bfe_u32 s%d, s2, 0x20005' % sCq))
    b.add(salu('s_mov_b32 s%d, 0x%08x' % (sCC, f2u(C1))))
    b.add(salu('s_mov_b32 s%d, 0x%08x' % (sCC + 1, f2u(C0))))
    b.add(salu('s_mov_b32 s%d, 0x%08x' % (sIK, f2u(1.0 / KAPPA))))
    b.add(salu('s_mov_b32 s%d, 0x%08x' % (sIK + 1, f2u(1.0 / KAPPA))))
    b.add(salu('s_mov_b32 s%d, 0x05040100' % sLO))
    b.add(salu('s_mov_b32 s%d, 0x07060302' % sHI))
    b.add(salu('s_mul_i32 s%d, s%d, 18' % (sT + 15, sCq)))
    b.add(salu('s_mov_b32 s%d, s%d' % (sO, sW)))
    for i in range(8):
        for odd in range(2):
            b.add(salu('s_mov_b32 s%d, %d' % (sROW + 2 * i + odd, (16 * (i // 4) + 2 * (i % 4) + odd) * 9216)))
    b.add(V('v_lshlrev_b32 v%d, 4, v%d' % (vL16, t1), [t1], [vL16]))
    b.add(V('v_and_b32 v%d, -4, v%d' % (vJ, vJ), [vJ], [vJ]))
    b.add(V('v_and_b32 v%d, 31, v%d' % (t2, t1), [t1], [t2]))
    b.add(V('v_lshrrev_b32 v%d, 5, v%d' % (t3, t1), [t1], [t3]))
    b.add(V('v_lshlrev_b32 v%d, 2, v%d' % (vOB, t2), [t2], [vOB]))
    b.add(V('v_mul_u32_u24 v%d, 73728, v%d' % (vO1, t3), [t3], [vO1]))
    b.add(V('v_add_u32 v%d, v%d, v%d' % (vO1, vO1, vOB), [vO1, vOB], [vO1]))
    b.add(V('v_and_b32 v%d, 30, v%d' % (vO2, t2), [t2], [vO2]))
    b.add(V('v_lshlrev_b32 v%d, 1, v%d' % (vO2, vO2), [vO2], [vO2]))
    b.add(V('v_lshl_add_u32 v%d, v%d, 9, v%d' % (vO2, t3, vO2), [t3, vO2], [vO2]))
    xo = vS + 4; xw = vS + 5; x8 = vS + 6; hw = vS + 7
    b.add(salu('s_mul_i32 s%d, s%d, 36864' % (sT, sBt)))
    b.add(salu('s_mul_i32 s%d, s%d, 4608' % (sT + 1, sW)))
    b.add(salu('s_add_u32 s%d, s%d, s%d' % (sT + 2, sT, sT + 1)))
    b.add(V('v_lshrrev_b32 v%d, 4, v%d' % (xo, t1), [t1], [xo]))
    b.add(V('v_mul_u32_u24 v%d, %d, v%d' % (hw, HSTR, xo), [xo], [hw]))
    b.add(V('v_mul_u32_u24 v%d, 1152, v%d' % (xo, xo), [xo], [xo]))
    b.add(V('v_and_b32 v%d, 0xf0, v%d' % (xw, vL16), [vL16], [xw]))
    b.add(V('v_add_u32 v%d, v%d, v%d' % (hw, hw, xw), [hw, xw], [hw]))
    b.add(V('v_lshrrev_b32 v%d, 1, v%d' % (x8, xw), [xw], [x8]))
    b.add(V('v_add_u32 v%d, v%d, v%d' % (x8, x8, xo), [x8, xo], [x8]))
    b.add(V('v_add_u32 v%d, v%d, v%d' % (xo, xo, xw), [xo, xw], [xo]))
    b.add(salu('s_mul_i32 s%d, s%d, 576' % (sT + 3, sHH)))
    b.add(salu('s_lshl_b32 s%d, s%d, 7' % (sT + 4, sCq)))
    b.add(salu('s_add_u32 s%d, s%d, s%d' % (sT + 4, sT + 4, sT + 3)))
    b.add(salu('s_add_u32 s%d, s%d, 512' % (sT + 5, sT + 3)))
    b.add(V('v_add_u32 v%d, s%d, v%d' % (t0, sT + 4, xo), [xo], [t0]))
    b.add(V('v_and_b32 v%d, 0xc0, v%d' % (t2, xw), [xw], [t2]))
    b.add(V('v_sub_u32 v%d, v%d, v%d' % (t2, xo, t2), [xo, t2], [t2]))
    b.add(V('v_add_u32 v%d, s%d, v%d' % (t2, sT + 5, t2), [t2], [t2]))
    b.add(V('v_cmp_gt_u32 vcc, 0x80, v%d' % xw, [xw], []))
    b.add(salu('s_mul_i32 s%d, s%d, %d' % (sT + 6, sW, 4 * HSTR)))
    b.add(salu('s_add_u32 s%d, s%d, %d' % (sT + 6, sT + 6, HBUF)))
    b.add(V('v_cndmask_b32 v%d, v%d, v%d, vcc' % (xw, t2, t0), [t2, t0], [xw]))
    b.add(V('v_add_u32 v%d, s%d, v%d' % (hw, sT + 6, hw), [hw], [hw]))
    b.add(V('v_and_b32 v%d, 1, v%d' % (t0, t1), [t1], [t0]))
    b.add(V('v_mul_u32_u24 v%d, 0x0202, v%d' % (t0, t0), [t0], [t0]))
    b.add(V('v_lshl_or_b32 v%d, v%d, 16, v%d' % (t0, t0, t0), [t0], [t0]))
    b.add(V('v_add_u32 v%d, 0x05040100, v%d' % (vSEL, t0), [t0], [vSEL]))
    b.add(V('v_xor_b32 v%d, 1, v%d' % (t3, t3), [t3], [t3]))
    b.add(V('v_mul_u32_u24 v%d, 0x3f80, v%d' % (vHE, t3), [t3], [vHE]))
    b.add(V('v_lshlrev_b32 v%d, 16, v%d' % (vHO, vHE), [vHE], [vHO]))
    for r in (vBR + 1, vHE + 1, vHO + 1) + tuple(R(vT, 6)):
        b.add(V('v_mov_b32 v%d, 0' % r, [], [r]))
    b.add(salu('s_add_u32 s%d, s%d, 3' % (sT + 7, sW)))
    b.add(salu('s_and_b32 s%d, s%d, 7' % (sT + 7, sT + 7)))
    b.add(salu('s_and_b32 s%d, s%d, 3' % (sT + 8, sT + 7)))
    b.add(salu('s_lshr_b32 s%d, s%d, 2' % (sT + 7, sT + 7)))
    b.add(salu('s_lshl_b32 s%d, s%d, 6' % (sT + 7, sT + 7)))
    b.add(salu('s_add_u32 s%d, s%d, s%d' % (sT + 7, sT + 7, sT + 8)))
    b.add(salu('s_add_u32 s%d, s%d, 29' % (sT + 7, sT + 7)))
    b.add(salu('s_lshl_b32 s%d, s%d, 25' % (sT + 8, sT + 7)))
    b.add(salu('s_or_b32 s%d, s%d, 0x8000' % (sT + 8, sT + 8)))
    tu = vU[1]; tt = vU[1] + 8; nt = vR[0]; p0 = vR[0] + 4; p1 = vR[0] + 8
    b.add(V('v_lshlrev_b32 v%d, 19, v%d' % (t0, t1), [t1], [t0]))
    b.add(V('v_add_u32 v%d, s%d, v%d' % (tu, sT + 8, t0), [t0], [tu]))
    for e in range(1, 8):
        b.add(V('v_add_u32 v%d, 0x%x, v%d' % (tu + e, e << 16, tu), [tu], [tu + e]))
    for j in range(4): b.add(pkmul(tt + 2 * j, tu + 2 * j, tu + 2 * j))
    for j in range(4): b.add(pkfma_c(tt + 2 * j, tt + 2 * j))
    for j in range(4): b.add(pkmul(tt + 2 * j, tt + 2 * j, tu + 2 * j))
    for j in range(8): b.add(vexp(tt + j))
    for j in range(4): b.add(pkfma_k(tt + 2 * j, tt + 2 * j))
    for j in range(8): b.add(vrcp(tt + j))
    for j in range(4): b.add(pkmul(tt + 2 * j, tt + 2 * j, tu + 2 * j))
    for j in range(4): b.add(cvtpk(nt + j, tt + 2 * j, tt + 2 * j + 1))
    b.add(V('v_add_u32 v%d, 0x%x, v%d' % (tu, (16 << 25) | 0x8000, t0), [t0], [tu]))
    for e in range(1, 8):
        b.add(V('v_add_u32 v%d, 0x%x, v%d' % (tu + e, e << 16, tu), [tu], [tu + e]))
    for e in range(8):
        b.add(V('v_mul_f32 v%d, 0x%08x, v%d' % (tu + e, f2u(0.5 * KAPPA), tu + e), [tu + e], [tu + e]))
    for j in range(4): b.add(cvtpk(p1 + j, tu + 2 * j, tu + 2 * j + 1))
    b.add(wait('lgkmcnt(0)'))
    stamp(b, 0)
    srd(b, sX, 4, 1179648)
    XA = vU[0]; XB = vBI; XO = vBI + 4
    b.add(I('buffer_load_dwordx4 %s, v%d, %s, s%d offen' % (vr(XO, 4), xw, sr(sX, 4), sT + 2), 'vld', [xw], R(XO, 4)))
    for i in range(4):
        b.add(I('buffer_load_dwordx4 %s, v%d, %s, s%d offen offset:%d' % (vr(XA + 4 * i, 4), xo, sr(sX, 4), sT + 2, 256 * i), 'vld', [xo], R(XA + 4 * i, 4)))
    b.add(I('buffer_load_dwordx2 %s, v%d, %s, s%d offen offset:1024' % (vr(XB, 2), x8, sr(sX, 4), sT + 2), 'vld', [x8], R(XB, 2)))
    b.add(salu('s_mov_b32 s%d, 0x00020000' % (sW1 + 3)))
    srd(b, sW2, 10, 294912); srd(b, sB1, 8, 9216)
    b.add(set_next_pair(0))
    b.add(w1_loads()); b.add(bias_load()); b.add(w2_loads(0)); b.add(w2_loads(1))
    b.add(V('v_lshrrev_b32 v%d, 1, v%d' % (t2, vOB), [vOB], [t2]))
    b.add(I('global_load_short_d16_hi v%d, v%d, s[12:13]' % (vB2, t2), 'vld', [t2], [vB2]))
    b.add(salu('s_bfe_u32 s%d, s2, 0x50003' % (sT + 9)))
    b.add(salu('s_mul_i32 s%d, s%d, 9216' % (sT + 9, sT + 9)))
    b.add(V('v_add_u32 v%d, s%d, v%d' % (t3, sT + 9, vJ), [vJ], [t3]))
    jd = vS + 8
    b.add(I('global_load_dword v%d, v%d, s[6:7]' % (jd, t3), 'vld', [t3], [jd]))
    b.add(I('global_load_dword v%d, v%d, s[10:11]' % (jd + 1, t3), 'vld', [t3], [jd + 1]))
    b.add(I('global_load_dword v%d, v%d, s[8:9]' % (jd + 2, vJ), 'vld', [vJ], [jd + 2]))
    srd(b, sOUT, 14, 1179648); srd(b, sWS, 18, 1048576)
    ta = t0; tb_ = t2
    STEP = 0x02000200
    b.add(salu('s_sub_u32 s%d, s%d, 16' % (sT + 9, sW)))
    b.add(salu('s_mul_i32 s%d, s%d, 0x%x' % (sT + 9, sT + 9, STEP)))
    b.add(salu('s_mov_b32 s%d, 0x%x' % (sT + 10, (8 * STEP) & 0xffffffff)))
    b.add(salu('s_mov_b32 s%d, 0x%x' % (sT + 11, (8 * STEP + 0x00800080) & 0xffffffff)))
    b.add(salu('s_xor_b32 s%d, s%d, 4' % (sT + 12, sW)))
    b.add(salu('s_sub_u32 s%d, s%d, s%d' % (sT + 13, sT + 12, sW)))
    b.add(salu('s_add_u32 s%d, s%d, 8' % (sT + 13, sT + 13)))
    b.add(salu('s_mul_i32 s%d, s%d, 0x%x' % (sT + 13, sT + 13, STEP)))
    b.add(salu('s_sub_u32 s%d, s%d, 0x00800080' % (sT + 13, sT + 13)))
    b.add(salu('s_lshl_b32 s%d, s%d, 10' % (sT + 14, sW)))
    b.add(salu('s_add_u32 s%d, s%d, %d' % (sT + 14, sT + 14, TB)))
    b.add(V('v_add_u32 v%d, s%d, v%d' % (ta, sT + 14, vL16), [vL16], [ta]))
    b.add(salu('s_lshl_b32 s%d, s%d, 10' % (sT + 14, sT + 12)))
    b.add(salu('s_add_u32 s%d, s%d, %d' % (sT + 14, sT + 14, TB + 65536)))
    b.add(V('v_add_u32 v%d, s%d, v%d' % (tb_, sT + 14, vL16), [vL16], [tb_]))
    src, dst = p1, p0
    for n in range(12):
        s = sT + 9 if n == 0 else (sT + 11 if n == 4 else (sT + 13 if n == 8 else sT + 10))
        for j in range(4):
            b.add(V('v_add_u32 v%d, s%d, v%d' % (dst + j, s, src + j), [src + j], [dst + j]))
        a = ta if n < 8 else tb_
        b.add(I('ds_write_b128 v%d, %s offset:%d' % (a, vr(dst, 4), 8192 * (n % 8)), 'dsw', [a] + R(dst, 4), []))
        src, dst = dst, src
    b.add(salu('s_lshl_b32 s%d, s%d, 10' % (sT + 14, sT + 7)))
    b.add(V('v_add_u32 v%d, s%d, v%d' % (t3, sT + 14, vL16), [vL16], [t3]))
    b.add(I('ds_write_b128 v%d, %s offset:%d' % (t3, vr(nt, 4), TB), 'dsw', [t3] + R(nt, 4), []))
    for r in R(vz, 8) + R(vR[1], 12): b.add(V('v_mov_b32 v%d, 0' % r, [], [r]))
    b.add(salu('s_cmp_eq_u32 s%d, 0' % sW)); b.add(salu('s_cbranch_scc0 L_sp1'))
    b.add(I('ds_write_b128 v%d, %s' % (ta, vr(vz, 4)), 'dsw', [ta] + R(vz, 4), []))
    b.add(I('ds_write_b128 v%d, %s' % (vL16, vr(vz, 4)), 'dsw', [vL16] + R(vz, 4), []))
    b.add(label('L_sp1'))
    b.add(salu('s_cmp_eq_u32 s%d, 4' % sW)); b.add(salu('s_cbranch_scc0 L_sp2'))
    b.add(I('ds_write_b128 v%d, %s' % (tb_, vr(vz, 4)), 'dsw', [tb_] + R(vz, 4), []))
    b.add(label('L_sp2'))
    b.add(salu('s_cmp_eq_u32 s%d, 7' % sW)); b.add(salu('s_cbranch_scc0 L_sp3'))
    b.add(V('v_lshrrev_b32 v%d, 2, v%d' % (t3, vL16), [vL16], [t3]))
    b.add(V('v_add_u32 v%d, %d, v%d' % (t3, TB + 0xff00, t3), [t3], [t3]))
    b.add(V('v_mov_b32 v%d, 0x7fc07fc0' % tb_, [], [tb_]))
    b.add(I('ds_write_b32 v%d, v%d' % (t3, tb_), 'dsw', [t3, tb_], []))
    b.add(label('L_sp3'))
    for y in (vY[0], vY[1], vY['S'], vU[1]): b.add(mfma8(y, vz, vz))
    stamp(b, 1)
    s1 = vBI + 8; s2 = vBI + 9; q = vBI + 10
    b.add(salu('s_mov_b32 s%d, 0x3f803f80' % (sT + 9)))
    b.add(V('v_mov_b32 v%d, 0' % s1, [], [s1])); b.add(V('v_mov_b32 v%d, 0' % s2, [], [s2]))
    for r in R(XA, 16) + R(XB, 2):
        b.add(V('v_dot2_f32_bf16 v%d, v%d, s%d, v%d' % (s1, r, sT + 9, s1), [r, s1], [s1], 'dot'))
        b.add(V('v_dot2_f32_bf16 v%d, v%d, v%d, v%d' % (s2, r, r, s2), [r, s2], [s2], 'dot'))
    stamp(b, 2)
    b.add(I('s_nop 2', 'other'))
    for sh in (8, 4, 2, 1):
        for s in (s1, s2):
            b.add(V('v_add_f32_dpp v%d, v%d, v%d row_ror:%d row_mask:0xf bank_mask:0xf' % (s, s, s, sh), [s], [s], 'dpp'))
        b.add(I('s_nop 0', 'other'))
    inv = f2u(1.0 / 576.0)
    b.add(V('v_mul_f32 v%d, 0x%08x, v%d' % (s1, inv, s1), [s1], [s1]))
    b.add(V('v_mul_f32 v%d, 0x%08x, v%d' % (s2, inv, s2), [s2], [s2]))
    b.add(V('v_fma_f32 v%d, -v%d, v%d, v%d' % (s2, s1, s1, s2), [s1, s2], [s2]))
    b.add(V('v_max_f32 v%d, 0, v%d' % (s2, s2), [s2], [s2]))
    b.add(cvtpk(q, s1, s2))
    b.add(V('v_lshlrev_b32 v%d, 16, v%d' % (s1, q), [q], [s1]))
    b.add(V('v_and_b32 v%d, 0xffff0000, v%d' % (s2, q), [q], [s2]))
    b.add(V('v_add_f32 v%d, 0x%08x, v%d' % (s2, f2u(1e-5), s2), [s2], [s2]))
    b.add(cvtpk(q, s2, s2))
    b.add(V('v_lshlrev_b32 v%d, 16, v%d' % (s2, q), [q], [s2]))
    b.add(V('v_sqrt_f32 v%d, v%d' % (s2, s2), [s2], [s2], 'trans'))
    xu = XA
    for j in range(4):
        b.add(V('v_lshlrev_b32 v%d, 16, v%d' % (xu + 2 * j, XO + j), [XO + j], [xu + 2 * j]))
        b.add(V('v_and_b32 v%d, 0xffff0000, v%d' % (xu + 2 * j + 1, XO + j), [XO + j], [xu + 2 * j + 1]))
    b.add(cvtpk(q, s2, s2))
    b.add(V('v_lshlrev_b32 v%d, 16, v%d' % (s2, q), [q], [s2]))
    b.add(V('v_rcp_f32 v%d, v%d' % (s2, s2), [s2], [s2], 'trans'))
    for e in range(8): b.add(V('v_sub_f32 v%d, v%d, v%d' % (xu + e, xu + e, s1), [xu + e, s1], [xu + e]))
    for j in range(4): b.add(cvtpk(XO + j, xu + 2 * j, xu + 2 * j + 1))
    for j in range(4):
        b.add(V('v_lshlrev_b32 v%d, 16, v%d' % (xu + 2 * j, XO + j), [XO + j], [xu + 2 * j]))
        b.add(V('v_and_b32 v%d, 0xffff0000, v%d' % (xu + 2 * j + 1, XO + j), [XO + j], [xu + 2 * j + 1]))
    for e in range(8): b.add(V('v_mul_f32 v%d, v%d, v%d' % (xu + e, xu + e, s2), [xu + e, s2], [xu + e]))
    for j in range(4): b.add(cvtpk(XO + j, xu + 2 * j, xu + 2 * j + 1))
    b.add(I('ds_write_b128 v%d, %s' % (hw, vr(XO, 4)), 'dsw', [hw] + R(XO, 4), []))
    b.add(V('v_bfe_u32 v%d, v%d, 2, 2' % (t0, t1), [t1], [t0]))
    b.add(V('v_lshrrev_b32 v%d, 5, v%d' % (t2, t1), [t1], [t2]))
    b.add(V('v_lshl_add_u32 v%d, v%d, 3, v%d' % (t0, t2, t0), [t2, t0], [t0]))
    b.add(V('v_mul_u32_u24 v%d, %d, v%d' % (t0, HSTR, t0), [t0], [t0]))
    b.add(V('v_bfe_u32 v%d, v%d, 4, 1' % (t2, t1), [t1], [t2]))
    b.add(V('v_lshl_add_u32 v%d, v%d, 5, v%d' % (t0, t2, t0), [t2, t0], [t0]))
    b.add(V('v_and_b32 v%d, 3, v%d' % (t2, t1), [t1], [t2]))
    b.add(V('v_lshl_add_u32 v%d, v%d, 3, v%d' % (t0, t2, t0), [t2, t0], [t0]))
    b.add(w1_perm('E')); b.add(w1_perm('O'))
    b.add(wait('lgkmcnt(0)'))
    stamp(b, 3)
    b.add(I('s_barrier', 'other'))
    for dt, col in ((0, 0), (1, 64), ('S', 128)):
        for j in range(4):
            rows = 16 * (j // 2) + 4 * (j % 2)
            b.add(I('ds_read_b64_tr_b16 %s, v%d offset:%d' % (vr(vH[dt] + 2 * j, 2), t0, HBUF + rows * HSTR + col), 'dsr', [t0], R(vH[dt] + 2 * j, 2)))
    b.add(mfma8(vBI, vBR, vHE))
    b.add(Tile('E', 0, 0).g1())
    b.add(I('s_nop 3', 'other'))
    stamp(b, 4)
    return b

def finish4(b, acc, tmp):
    for j in range(2):
        b.add(I('v_pk_mul_f32 %s, %s, %s' % (vr(acc + 2 * j, 2), vr(acc + 2 * j, 2), sr(sIK, 2)), 'pk', R(acc + 2 * j, 2), R(acc + 2 * j, 2)))
    for j in range(2): b.add(cvtpk(tmp + j, acc + 2 * j, acc + 2 * j + 1))
    for j in range(2):
        b.add(V('v_lshlrev_b32 v%d, 16, v%d' % (acc + 2 * j, tmp + j), [tmp + j], [acc + 2 * j]))
        b.add(V('v_and_b32 v%d, 0xffff0000, v%d' % (acc + 2 * j + 1, tmp + j), [tmp + j], [acc + 2 * j + 1]))
    for e in range(4): b.add(V('v_add_f32 v%d, v%d, v%d' % (acc + e, acc + e, vB2), [acc + e, vB2], [acc + e]))
    for j in range(2): b.add(cvtpk(acc + j, acc + 2 * j, acc + 2 * j + 1))

def out_base(b, d):
    b.add(V('v_mul_u32_u24 v%d, 288, v%d' % (d, vOB), [vOB], [d]))
    b.add(V('v_lshrrev_b32 v%d, 9, v%d' % (d + 1, vL16), [vL16], [d + 1]))
    b.add(V('v_lshl_add_u32 v%d, v%d, 3, v%d' % (d, d + 1, d), [d, d + 1], [d]))

def pkadd(d, a, c): return I('v_pk_add_f32 %s, %s, %s' % (vr(d, 2), vr(a, 2), vr(c, 2)), 'pk', R(a, 2) + R(c, 2), R(d, 2))

def mid():
    b = Block('MID')
    ys = vY['S']; t0 = vS; t1 = vS + 1
    b.add(salu('s_lshl_b32 s%d, s%d, 12' % (sT, sW)))
    b.add(V('v_add_u32 v%d, s%d, v%d' % (t0, sT, vL16), [vL16], [t0]))
    for q in range(4):
        b.add(I('ds_write_b128 v%d, %s offset:%d' % (t0, vr(ys + 4 * q, 4), SSLOT + 1024 * q), 'dsw', [t0] + R(ys + 4 * q, 4), []))
    b.add(V('v_mov_b32 v%d, 1' % t1, [], [t1]))
    b.add(V('v_mov_b32 v%d, 0' % t0, [], [t0]))
    b.add(wait('lgkmcnt(0)'))
    b.add(salu('s_mov_b64 exec, 1'))
    b.add(I('ds_add_rtn_u32 v%d, v%d, v%d' % (t1, t0, t1), 'dsr', [t0, t1], [t1]))
    b.add(wait('lgkmcnt(0)'))
    b.add(salu('s_mov_b64 exec, -1'))
    b.add(V('v_readfirstlane_b32 s%d, v%d' % (sT, t1), [t1], [], 'rfl'))
    b.add(I('s_nop 3', 'other'))
    b.add(salu('s_cmp_eq_u32 s%d, 7' % sT))
    b.add(salu('s_cbranch_scc1 L_CLOSER'))
    return b

def closer():
    b = Block('CLOSER')
    ys = vY['S']; hs = vH['S']; t0 = vS; t1 = vS + 1; t2 = vS + 2; x4 = vS + 4
    b.add(label('L_CLOSER'))
    for q in range(4):
        b.add(I('ds_read_b128 %s, v%d offset:%d' % (vr(ys + 4 * q, 4), vL16, SSLOT + 1024 * q), 'dsr', [vL16], R(ys + 4 * q, 4)))
    bufs = [hs, hs + 4, x4, x4 + 4]
    for w in range(1, 8):
        for q in range(4):
            b.add(I('ds_read_b128 %s, v%d offset:%d' % (vr(bufs[q], 4), vL16, SSLOT + 4096 * w + 1024 * q), 'dsr', [vL16], R(bufs[q], 4)))
        for q in range(4):
            for j in range(2): b.add(pkadd(ys + 4 * q + 2 * j, ys + 4 * q + 2 * j, bufs[q] + 2 * j))
    b.add(V('v_mov_b32 v%d, 1' % t1, [], [t1]))
    b.add(V('v_mov_b32 v%d, 4' % t0, [], [t0]))
    b.add(I('ds_write_b32 v%d, v%d' % (t0, t1), 'dsw', [t0, t1], []))
    b.add(salu('s_lshl_b32 s%d, s%d, 1' % (sT, sBt)))
    b.add(salu('s_add_u32 s%d, s%d, s%d' % (sT, sT, sHH)))
    b.add(salu('s_lshl_b32 s%d, s%d, 14' % (sT + 1, sT)))
    b.add(salu('s_lshl_b32 s%d, s%d, 12' % (sT + 2, sCq)))
    b.add(salu('s_add_u32 s%d, s%d, s%d' % (sT + 2, sT + 2, sT + 1)))
    for q in range(4):
        b.add(I('buffer_store_dwordx4 %s, v%d, %s, s%d offen offset:%d sc1' % (vr(ys + 4 * q, 4), vL16, sr(sWS, 4), sT + 2, 1024 * q), 'vst', [vL16] + R(ys + 4 * q, 4), []))
    b.add(salu('s_lshl_b32 s%d, s%d, 2' % (sT, sT)))
    b.add(V('v_mov_b32 v%d, s%d' % (t0, sT), [], [t0]))
    b.add(wait('vmcnt(0)'))
    b.add(salu('s_mov_b64 exec, 1'))
    b.add(I('global_atomic_add v%d, v%d, v%d, s[16:17] sc0' % (t2, t0, t1), 'vld', [t0, t1], [t2]))
    b.add(wait('vmcnt(0)'))
    b.add(salu('s_mov_b64 exec, -1'))
    b.add(V('v_readfirstlane_b32 s%d, v%d' % (sT, t2), [t2], [], 'rfl'))
    b.add(I('s_nop 3', 'other'))
    b.add(salu('s_cmp_eq_u32 s%d, 3' % sT))
    b.add(salu('s_cbranch_scc0 L_L22'))
    for q in range(4):
        b.add(I('buffer_load_dwordx4 %s, v%d, %s, s%d offen offset:%d sc1' % (vr(ys + 4 * q, 4), vL16, sr(sWS, 4), sT + 1, 1024 * q), 'vld', [vL16], R(ys + 4 * q, 4)))
    for c in range(1, 4):
        b.add(salu('s_add_u32 s%d, s%d, 4096' % (sT + 1, sT + 1)))
        for q in range(4):
            b.add(I('buffer_load_dwordx4 %s, v%d, %s, s%d offen offset:%d sc1' % (vr(bufs[q], 4), vL16, sr(sWS, 4), sT + 1, 1024 * q), 'vld', [vL16], R(bufs[q], 4)))
        for q in range(4):
            for j in range(2): b.add(pkadd(ys + 4 * q + 2 * j, ys + 4 * q + 2 * j, bufs[q] + 2 * j))
    out_base(b, t0)
    b.add(salu('s_mul_i32 s%d, s%d, 36864' % (sT, sBt)))
    b.add(salu('s_mul_i32 s%d, s%d, 576' % (sT + 1, sHH)))
    b.add(salu('s_add_u32 s%d, s%d, s%d' % (sT, sT, sT + 1)))
    for q in range(4):
        finish4(b, ys + 4 * q, t2)
        b.add(I('buffer_store_dwordx2 %s, v%d, %s, s%d offen offset:%d' % (vr(ys + 4 * q, 2), t0, sr(sOUT, 4), sT, 512 + 16 * q), 'vst', [t0] + R(ys + 4 * q, 2), []))
    b.add(salu('s_branch L_L22'))
    return b

def epilogue():
    b = Block('EPI')
    b.add(slot(Tile('O', 1, 1), None, None, None, [], []))
    stamp(b, 6)
    t0 = vS; t1 = vS + 1; RR = vA
    b.add(V('v_mov_b32 v%d, 4' % t0, [], [t0]))
    b.add(label('L_spin'))
    b.add(I('ds_read_b32 v%d, v%d' % (t1, t0), 'dsr', [t0], [t1]))
    b.add(wait('lgkmcnt(0)'))
    b.add(V('v_readfirstlane_b32 s%d, v%d' % (sT, t1), [t1], [], 'rfl'))
    b.add(I('s_nop 3', 'other'))
    b.add(salu('s_cmp_eq_u32 s%d, 0' % sT))
    b.add(salu('s_cbranch_scc1 L_spin'))
    b.add(salu('s_lshl_b32 s%d, s%d, 10' % (sT, sW)))
    b.add(V('v_add_u32 v%d, s%d, v%d' % (t0, sT, vL16), [vL16], [t0]))
    b.add(wait('vmcnt(0)'))
    for g in range(8):
        y = vY[g // 4] + 4 * (g % 4)
        b.add(salu('s_cmp_eq_u32 s%d, %d' % (sW, g)))
        b.add(salu('s_cbranch_scc1 L_own%d' % g))
        b.add(I('ds_write_b128 v%d, %s offset:%d' % (t0, vr(y, 4), 8192 * g), 'dsw', [t0] + R(y, 4), []))
        b.add(salu('s_branch L_nx%d' % g))
        b.add(label('L_own%d' % g))
        for e in range(4): b.add(V('v_mov_b32 v%d, v%d' % (RR + 4 * g + e, y + e), [y + e], [RR + 4 * g + e]))
        b.add(label('L_nx%d' % g))
    b.add(salu('s_lshl_b32 s%d, s%d, 13' % (sT, sW)))
    b.add(V('v_add_u32 v%d, s%d, v%d' % (t0, sT, vL16), [vL16], [t0]))
    out_base(b, vS + 2)
    b.add(salu('s_mul_i32 s%d, s%d, 36864' % (sT, sBt)))
    b.add(salu('s_mul_i32 s%d, s%d, 576' % (sT + 1, sHH)))
    b.add(salu('s_add_u32 s%d, s%d, s%d' % (sT, sT, sT + 1)))
    b.add(salu('s_lshl_b32 s%d, s%d, 7' % (sT + 1, sCq)))
    b.add(salu('s_add_u32 s%d, s%d, s%d' % (sT, sT, sT + 1)))
    b.add(salu('s_lshl_b32 s%d, s%d, 4' % (sT + 1, sW)))
    b.add(salu('s_add_u32 s%d, s%d, s%d' % (sT, sT, sT + 1)))
    b.add(wait('lgkmcnt(0)'))
    stamp(b, 7)
    b.add(I('s_barrier', 'other'))
    for g in range(8):
        b.add(salu('s_cmp_eq_u32 s%d, %d' % (sW, g)))
        b.add(salu('s_cbranch_scc1 L_sk%d' % g))
        b.add(I('ds_read_b128 %s, v%d offset:%d' % (vr(RR + 4 * g, 4), t0, 1024 * g), 'dsr', [t0], R(RR + 4 * g, 4)))
        b.add(label('L_sk%d' % g))
    b.add(wait('lgkmcnt(0)'))
    for step in (4, 2, 1):
        for g in range(step):
            for j in range(2): b.add(pkadd(RR + 4 * g + 2 * j, RR + 4 * g + 2 * j, RR + 4 * (g + step) + 2 * j))
    finish4(b, RR, vS + 4)
    b.add(I('buffer_store_dwordx2 %s, v%d, %s, s%d offen' % (vr(RR, 2), vS + 2, sr(sOUT, 4), sT), 'vst', [vS + 2] + R(RR, 2), []))
    if cfg.diag:
        stamp(b, 8)
        b.add(salu('s_lshl_b32 s%d, s2, 3' % sT))
        b.add(salu('s_add_u32 s%d, s%d, s%d' % (sT, sT, sW)))
        b.add(salu('s_lshl_b32 s%d, s%d, 8' % (sT, sT)))
        b.add(salu('s_add_u32 s%d, s%d, 0x200000' % (sT, sT)))
        b.add(V('v_lshrrev_b32 v%d, 2, v%d' % (t0, vL16), [vL16], [t0]))
        b.add(V('v_add_u32 v%d, s%d, v%d' % (t0, sT, t0), [t0], [t0]))
        b.add(I('global_store_dword v%d, v19, s[18:19]' % t0, 'vst', [t0, 19], []))
    b.add(label('L_END'))
    b.add(I('s_endpgm', 'other'))
    return b

def build():
    pro = prologue()
    l33 = loop_body('L33', [0, 'S', 1]); l22 = loop_body('L22', [0, 1])
    l33.ins.insert(0, label('L_L33')); l22.ins.insert(0, label('L_L22'))
    l33.add(salu('s_cmp_lt_u32 s%d, 18' % sO)); l33.add(salu('s_cbranch_scc1 L_L33'))
    l22.add(salu('s_cmp_lt_u32 s%d, 72' % sO)); l22.add(salu('s_cbranch_scc1 L_L22'))
    md = mid(); cl = closer(); ep = epilogue()
    if cfg.diag:
        stamp(md, 5)
    traces = [[pro, l33, l33, l33, md, l22, l22, l22, ep], [pro, l33, l33, md, cl, l22, l22, ep]]
    for t in traces: wait_pass(t)
    errs = []
    for t in traces: errs += hazard_check(t)
    for e in sorted(set(errs)): print('HAZARD', e, file=sys.stderr)
    hdr = open('standalone__mixer_token_mlp__sampling.s.ref').read().split('\n')
    hdr = [l for l in hdr[:11]]
    out = hdr + ['; @launch grid=(256,1,1) block=(512,1,1) lds=%d' % LDS_BYTES,
                 '.amdgcn_target "amdgcn-amd-amdhsa--gfx950"', '.text', '.globl ' + KN, '.p2align 8',
                 '.type %s,@function' % KN, KN + ':']
    out += [render(pro), '.p2align 6', render(l33), render(md), '.p2align 6', render(l22), render(ep), render(cl)]
    out += ['.section .rodata,"a"', '.p2align 6', '.amdhsa_kernel ' + KN,
            '  .amdhsa_next_free_vgpr 256', '  .amdhsa_next_free_sgpr 96', '  .amdhsa_accum_offset 256',
            '  .amdhsa_group_segment_fixed_size 0', '  .amdhsa_kernarg_size 64', '  .amdhsa_user_sgpr_count 2',
            '  .amdhsa_user_sgpr_kernarg_segment_ptr 1', '  .amdhsa_system_sgpr_workgroup_id_x 1', '.end_amdhsa_kernel']
    return '\n'.join(out) + '\n', len(errs)

cfg.look_span = 0.9
if __name__ == '__main__':
    import argparse
    ap = argparse.ArgumentParser()
    ap.add_argument('-o', default='standalone__mixer_token_mlp__sampling.s')
    ap.add_argument('--diag', action='store_true')
    ap.add_argument('--set', action='append', default=[])
    a = ap.parse_args()
    cfg.diag = a.diag
    for s in a.set:
        k, v = s.split('=', 1); setattr(cfg, k, eval(v))
    txt, ne = build()
    open(a.o, 'w').write(txt)
    print('wrote', a.o, len(txt), 'bytes; hazards', ne)
```
